```python
import torch

def _softmax(x, axis=-1):
    return torch.softmax(x, dim=axis)
def _gelu(x):
    return torch.nn.functional.gelu(x, approximate="tanh")
def _silu(x):
    return torch.nn.functional.silu(x)
def _sigmoid(x):
    return torch.sigmoid(x)
def _layernorm(x, axis=-1, eps=1e-5):
    m = x.mean(dim=axis, keepdim=True)
    v = x.var(dim=axis, keepdim=True, unbiased=False)
    return (x - m) / torch.sqrt(v + eps)
def _scatter_add(tgt, idx, src, axis=0):
    return tgt.clone().index_add_(axis, idx, src)
def _segment_sum(src, seg, n):
    out = torch.zeros((n,) + src.shape[1:], dtype=src.dtype)
    return out.index_add_(0, seg, src)
def _pad(x, pw):
    flat = tuple(v for pair in reversed(pw) for v in pair)
    return torch.nn.functional.pad(x, flat)

kernel_name = 'standalone__gated_linear_recurrence__prompt'

def setup_inputs():

    _w = (lambda a: (lambda t: t.to(torch.bfloat16) if t.is_floating_point() else t)(torch.as_tensor(a)))
    B, H, T, D = 1, 32, 2048, 128
    return {
        "q": _w((lambda *s: torch.randn(*s, dtype=torch.bfloat16) * 0.05)(B, H, T, D)),
        "k": _w((lambda *s: torch.randn(*s, dtype=torch.bfloat16) * 0.05)(B, H, T, D)),
        "v": _w((lambda *s: torch.randn(*s, dtype=torch.bfloat16) * 0.05)(B, H, T, D)),
        "g": _w((lambda *s: torch.randn(*s, dtype=torch.bfloat16) * 0.8)(B, H, T, D)),
    }

def reference(q, k, v, g):
    B, H, T, D = q.shape
    scale = D ** -0.5
    a = _sigmoid(g)
    S = k[:, :, 0, :, None] * v[:, :, 0, None, :] * 0.0
    outs = []
    for t in range(T):
        S = a[:, :, t, :, None] * S + k[:, :, t, :, None] * v[:, :, t, None, :]
        ot = torch.einsum("bhd,bhde->bhe", q[:, :, t, :], S) * scale
        outs.append(ot)
    return torch.stack(outs, 2)
```

```python
import re

TRANS = ("v_exp_f32", "v_log_f32", "v_rcp_f32", "v_rsq_f32", "v_sqrt_f32", "v_sin_f32", "v_cos_f32")

def regs_of(op):
    op = op.strip()
    m = re.fullmatch(r"-?\|?([vs])(\d+)\|?", op)
    if m:
        return [(m.group(1), int(m.group(2)))]
    m = re.fullmatch(r"-?([vs])\[(\d+):(\d+)\]", op)
    if m:
        return [(m.group(1), i) for i in range(int(m.group(2)), int(m.group(3)) + 1)]
    if op == "vcc":
        return [("s", 106), ("s", 107)]
    if op == "exec":
        return [("s", 126), ("s", 127)]
    if op == "m0":
        return [("s", 124)]
    return []

class Asm:
    def __init__(self):
        self.lines = []
        self.hist = []
        self.lgkm = []
        self.vm = []
        self.nops = 0

    def raw(self, text):
        self.lines.append(text)

    def comment(self, text):
        self.lines.append("    ; " + text)

    def label(self, name):
        self.flush_hazards()
        self.lines.append(name + ":")

    def flush_hazards(self):
        self._nop(13)
        self.hist = []

    def _nop(self, n):
        while n > 0:
            k = min(n, 16)
            self.lines.append(f"    s_nop {k-1}")
            self.hist.append(dict(kind="nop", wr=set(), rdC=set(), ws=k, st=set()))
            self.nops += 1
            n -= k

    def wait(self, vm=None, lgkm=None):
        parts = []
        if vm is not None:
            parts.append(f"vmcnt({vm})")
            self.vm = self.vm[-vm:] if vm > 0 else []
        if lgkm is not None:
            parts.append(f"lgkmcnt({lgkm})")
            self.lgkm = self.lgkm[-lgkm:] if lgkm > 0 else []
        self.lines.append("    s_waitcnt " + " ".join(parts))
        self.hist.append(dict(kind="salu", wr=set(), rdC=set(), ws=1, st=set()))

    def _auto_wait(self, touched):
        needv = None
        for idx, dst in enumerate(self.vm):
            if dst & touched:
                needv = len(self.vm) - 1 - idx
        needl = None
        for idx, dst in enumerate(self.lgkm):
            if dst & touched:
                needl = len(self.lgkm) - 1 - idx
        if needv is not None or needl is not None:
            self.wait(vm=needv, lgkm=needl)

    def e(self, text, track=True):
        text = text.strip()
        parts = text.split(None, 1)
        mn = parts[0]
        rest = parts[1] if len(parts) > 1 else ""
        ops = []
        cur = ""
        depth = 0
        for ch in rest:
            if ch == "[": depth += 1
            if ch == "]": depth -= 1
            if ch == "," and depth == 0:
                ops.append(cur.strip()); cur = ""
            else:
                cur += ch
        if cur.strip(): ops.append(cur.strip())
        mods = ""
        if ops:
            sp = ops[-1].split(None, 1)
            if len(sp) > 1:
                ops[-1] = sp[0]; mods = sp[1]
        is_dpp = "_dpp" in mn
        base = mn.replace("_dpp", "").replace("_e32", "").replace("_e64", "")
        wr, rd, rdC, st = set(), set(), set(), set()
        kind = None
        if mn.startswith("v_mfma"):
            kind = "mfma"
            wr = set(regs_of(ops[0])); rd = set(regs_of(ops[1]) + regs_of(ops[2]) + regs_of(ops[3])); rdC = set(regs_of(ops[3]))
            rdAB = set(regs_of(ops[1]) + regs_of(ops[2]))
        elif mn.startswith("v_permlane"):
            kind = "valu"; wr = set(regs_of(ops[0]) + regs_of(ops[1])); rd = set(wr)
        elif mn.startswith("v_cmp"):
            kind = "valu"; wr = set(regs_of(ops[0])); rd = set(sum((regs_of(o) for o in ops[1:]), []))
        elif mn.startswith("v_readfirstlane") or mn.startswith("v_readlane"):
            kind = "valu"; wr = set(regs_of(ops[0])); rd = set(sum((regs_of(o) for o in ops[1:]), []))
        elif mn.startswith("v_"):
            kind = "trans" if base in TRANS else "valu"
            wr = set(regs_of(ops[0])); rd = set(sum((regs_of(o) for o in ops[1:]), []))
            if is_dpp or base in ("v_fmac_f32",): rd |= wr
            if base == "v_cndmask_b32" and len(ops) == 3: rd |= set(regs_of("vcc"))
        elif mn.startswith("ds_read"):
            kind = "ds"; wr = set(regs_of(ops[0])); rd = set(regs_of(ops[1]))
        elif mn.startswith("ds_write"):
            kind = "ds"; rd = set(sum((regs_of(o) for o in ops), []))
        elif mn.startswith("buffer_load"):
            kind = "vmem"
            if " lds" in (" " + mods):
                rd = set(sum((regs_of(o) for o in ops), [])) | {("s", 124)}
                kind = "vmemlds"
            else:
                wr = set(regs_of(ops[0])); rd = set(sum((regs_of(o) for o in ops[1:]), []))
        elif mn.startswith("buffer_store"):
            kind = "vmem"; rd = set(sum((regs_of(o) for o in ops), []))
            if "x4" in mn or "x3" in mn: st = set(regs_of(ops[0]))
        elif mn.startswith("buffer_atomic"):
            kind = "vmem"; rd = set(sum((regs_of(o) for o in ops), [])); wr = set(regs_of(ops[0])[:1])
        elif mn.startswith("s_"):
            kind = "salu"
            if mn.startswith(("s_cmp", "s_cbranch", "s_branch", "s_barrier", "s_sleep", "s_endpgm", "s_setprio", "s_nop", "s_bitcmp")):
                rd = set(sum((regs_of(o) for o in ops), []))
            else:
                wr = set(regs_of(ops[0])); rd = set(sum((regs_of(o) for o in ops[1:]), []))
                if "saveexec" in mn: wr |= set(regs_of("exec"))
        else:
            raise ValueError("unknown instr " + text)
        vtouch = {r for r in (wr | rd) if r[0] == "v"}
        self._auto_wait(vtouch)
        if kind == "ds" and len(self.lgkm) >= 15:
            self.wait(lgkm=14)
        if kind in ("vmem", "vmemlds") and len(self.vm) >= 62:
            self.wait(vm=61)
        need = 0
        dist = 0
        isvalu = kind in ("valu", "trans")
        for h in reversed(self.hist):
            req = 0
            hk = h["kind"]
            hv = hk in ("valu", "trans")
            if hv:
                wv = {r for r in h["wr"] if r[0] == "v"}
                wsg = {r for r in h["wr"] if r[0] == "s"}
                if is_dpp and (wv & rd): req = max(req, 2)
                if mn.startswith("v_permlane") and (wv & rd): req = max(req, 2)
                if kind == "mfma" and (wv & rd): req = max(req, 2)
                if mn.startswith(("v_readfirstlane", "v_readlane")) and (wv & rd): req = max(req, 1)
                if hk == "trans" and isvalu and kind != "trans" and (wv & rd): req = max(req, 1)
                if hk == "trans" and kind == "trans" and (wv & rd): req = max(req, 1)
                if hk == "trans" and kind in ("ds", "vmem") and (wv & rd): req = max(req, 1)
                if wsg & rd:
                    if kind in ("vmem", "vmemlds"): req = max(req, 5)
                    elif isvalu: req = max(req, 4 if mn.startswith("v_readlane") else 2)
                    elif kind == "salu": req = max(req, 1)
            if hk == "mfma":
                if kind == "mfma":
                    if h["wr"] & rdAB: req = max(req, 8)
                    if (h["wr"] & rdC) and h["wr"] != rdC: req = max(req, 6)
                    if (h["wr"] & wr) and h["wr"] != rdC: req = max(req, 8)
                elif kind != "salu" and (h["wr"] & (rd | wr)): req = max(req, 8)
                if isvalu and (h["rdC"] & wr): req = max(req, 3)
            if hk == "salu" and ("s", 124) in h["wr"] and kind == "vmemlds": req = max(req, 1)
            if h["st"] and (h["st"] & wr): req = max(req, 2)
            if req > dist: need = max(need, req - dist)
            dist += h["ws"]
            if dist > 12: break
        if need: self._nop(need)
        self.lines.append("    " + text)
        self.hist.append(dict(kind=kind, wr=wr, rdC=rdC, ws=1, st=st))
        if len(self.hist) > 40: self.hist = self.hist[-20:]
        if track:
            if kind == "ds": self.lgkm.append({r for r in wr})
            if kind in ("vmem", "vmemlds"): self.vm.append({r for r in wr})

    def text(self):
        return "\n".join(self.lines) + "\n"
```

```python
import sys
from asmlib import Asm

NAME = "standalone__gated_linear_recurrence__prompt"
STAMP = "--stamp" in sys.argv
FORCE_FB = "--forcefb" in sys.argv

L_KT = 0
L_VQ = 65536
L_PT = 131072
L_TOT = 147456
L_EP = 151552
L_AS = 151616
LDS_BYTES = 155648
W_ST = 0
W_A = 8 << 20
W_F = 9 << 20
W_STAMP = 10 << 20
W_SIZE = 12 << 20
OOB = 0x40000000

sQ, sK, sV, sG, sO, sD, sW = 32, 36, 40, 44, 48, 52, 56
s_h, s_seg, s_w, s_off = 3, 4, 5, 6
s_nl2e = 8
s_one = 10
s_scale = 12
s_ep, s_nep = 14, 15
s_slot = 7
sM = 64
s_t = 80
s_ex = 96

def srd(r): return f"s[{r}:{r+3}]"
def vr(a, n): return f"v[{a}:{a+n-1}]"

v_tid, v_in, v_lin, v_pta, v_tota, v_t0, v_t1, v_max = 0, 1, 2, 3, 4, 5, 6, 7
v_kr = 8
vP = 16
vKW = 80
vQ = 112
vG = 144
vK = 176
vT = 208
vV = 144
vS = 176

a = Asm()
def P(u, t): return vP + (u*2+t)*8
def KW(u, t): return vKW + (u*2+t)*4
def Q(u, t): return vQ + (u*2+t)*4
def G(u, t): return vG + (u*2+t)*4
def K(u, t): return vK + (u*2+t)*4

stamp_n = [0]
def stamp():
    if not STAMP: return
    n = stamp_n[0]; stamp_n[0] += 1
    a.raw(f"    s_memtime s[98:99]")
    a.raw("    s_waitcnt lgkmcnt(0)")
    a.lgkm = []
    a.e(f"s_mov_b32 s{16+n}, s98")
def stamp_flush():
    if not STAMP: return
    a.e(f"s_lshl_b32 s98, s{s_slot}, 6")
    a.e(f"s_add_u32 s98, s98, {W_STAMP}")
    a.e("s_mov_b64 exec, 1")
    for n in range(stamp_n[0]):
        a.e(f"v_mov_b32 v{16+n}, s{16+n}")
        a.e(f"buffer_store_dword v{16+n}, off, {srd(sW)}, s98 offset:{4*n}")

def prologue():
    a.e("s_cmp_ge_u32 s2, 256")
    a.e("s_cbranch_scc1 L_end")
    a.raw("    s_load_dwordx8 s[16:23], s[0:1], 0")
    a.raw("    s_load_dwordx4 s[24:27], s[0:1], 32")
    a.raw("    s_load_dwordx2 s[28:29], s[0:1], 48")
    a.raw(f"    s_memrealtime s[{s_t}:{s_t+1}]")
    a.e(f"s_and_b32 s{s_h}, s2, 31")
    a.e(f"s_lshr_b32 s{s_seg}, s2, 5")
    a.e(f"v_lshrrev_b32 v{v_t0}, 6, v0")
    a.e(f"v_and_b32 v0, 63, v0")
    a.e(f"v_readfirstlane_b32 s{s_w}, v{v_t0}")
    a.e(f"v_and_b32 v{v_t0}, 15, v0")
    a.e(f"v_lshrrev_b32 v{v_t1}, 4, v0")
    a.e(f"v_lshlrev_b32 v{v_in}, 9, v{v_t0}")
    a.e(f"v_lshl_add_u32 v{v_in}, v{v_t1}, 4, v{v_in}")
    a.e(f"s_lshl_b32 s{s_off}, s{s_h}, 19")
    a.e(f"s_lshl_b32 s{s_t+2}, s{s_seg}, 16")
    a.e(f"s_add_u32 s{s_off}, s{s_off}, s{s_t+2}")
    a.e(f"s_lshl_b32 s{s_t+2}, s{s_w}, 13")
    a.e(f"s_add_u32 s{s_off}, s{s_off}, s{s_t+2}")
    a.e(f"s_lshl_b32 s{s_slot}, s{s_h}, 3")
    a.e(f"s_add_u32 s{s_slot}, s{s_slot}, s{s_seg}")
    a.e(f"s_lshl_b32 s{s_slot}, s{s_slot}, 3")
    a.e(f"s_add_u32 s{s_slot}, s{s_slot}, s{s_w}")
    a.raw("    s_waitcnt lgkmcnt(0)")
    for r, p, n in ((sQ, 16, 1 << 24), (sK, 18, 1 << 24), (sV, 20, 1 << 24), (sG, 22, 1 << 24), (sO, 24, 1 << 24), (sD, 26, 256), (sW, 28, W_SIZE)):
        a.e(f"s_mov_b32 s{r}, s{p}")
        a.e(f"s_and_b32 s{r+1}, s{p+1}, 0xffff")
        a.e(f"s_mov_b32 s{r+2}, {n}")
        a.e(f"s_mov_b32 s{r+3}, 0x00020000")
    a.e(f"s_or_b32 s{s_ep}, s{s_t}, 1")
    a.e(f"s_cmp_lg_u32 s{s_w}, 0")
    a.e("s_cbranch_scc1 L_noatom")
    a.e(f"v_mov_b32 v{vT+46}, s{s_ep}")
    a.e(f"v_mov_b32 v{vT+47}, 0")
    a.e(f"v_mov_b32 v{v_max}, 0")
    a.e(f"s_lshl_b32 s{s_t+2}, s{s_h}, 2")
    a.e("s_mov_b64 exec, 1")
    a.e(f"buffer_atomic_cmpswap v[{vT+46}:{vT+47}], v{v_max}, {srd(sD)}, s{s_t+2} offen sc0 sc1", track=False)
    a.e("s_mov_b64 exec, -1")
    a.label("L_noatom")
    for u in range(4):
        for t in range(2):
            a.e(f"buffer_load_dwordx4 {vr(G(u,t),4)}, v{v_in}, {srd(sG)}, s{s_off} offen offset:{t*256+u*64}")
        for t in range(2):
            a.e(f"buffer_load_dwordx4 {vr(K(u,t),4)}, v{v_in}, {srd(sK)}, s{s_off} offen offset:{t*256+u*64}")
    a.e(f"v_and_b32 v{v_t0}, 15, v0")
    a.e(f"v_lshrrev_b32 v{v_t0}, 1, v{v_t0}")
    a.e(f"v_xor_b32 v{v_t0}, v{v_t0}, v{v_t1}")
    a.e(f"v_lshlrev_b32 v{v_t0}, 5, v{v_t0}")
    a.e(f"v_and_b32 v{v_lin}, 1, v0")
    a.e(f"v_lshl_add_u32 v{v_t0}, v{v_lin}, 4, v{v_t0}")
    a.e(f"v_lshl_add_u32 v{v_t0}, v{v_t1}, 8, v{v_t0}")
    a.e(f"v_xor_b32 v{v_lin}, 128, v{v_t0}")
    a.e(f"s_lshl_b32 s{s_t+2}, s{s_w}, 13")
    a.e(f"s_add_u32 s{s_t+2}, s{s_t+2}, {L_VQ}")
    a.e(f"s_add_u32 s{s_t+3}, s{s_off}, 4096")
    for n in range(8):
        if n == 0: a.e(f"s_mov_b32 m0, s{s_t+2}")
        if n == 4:
            a.e(f"s_add_u32 s{s_t+2}, s{s_t+2}, 4096")
            a.e(f"s_mov_b32 m0, s{s_t+2}")
        va = v_lin if (n >> 1) & 1 else v_t0
        so = s_off if n < 4 else s_t+3
        a.e(f"buffer_load_dwordx4 v{va}, {srd(sV)}, s{so} offen offset:{(n&3)*1024} lds")
    for u in range(4):
        for t in range(2):
            a.e(f"buffer_load_dwordx4 {vr(Q(u,t),4)}, v{v_in}, {srd(sQ)}, s{s_off} offen offset:{t*256+u*64}")
    for j in range(2):
        a.e(f"s_mov_b32 s{s_nl2e+j}, 0xbfb8aa3b")
        a.e(f"s_mov_b32 s{s_one+j}, 1.0")
        a.e(f"s_mov_b32 s{s_scale+j}, 0x3db504f3")
    a.e(f"v_lshlrev_b32 v{v_lin}, 4, v0")
    a.e(f"v_add_u32 v{v_pta}, {L_PT}, v{v_lin}")
    a.e(f"v_add_u32 v{v_lin}, {L_VQ}, v{v_lin}")
    a.e(f"v_lshlrev_b32 v{v_tota}, 5, v{v_t1}")
    a.e(f"v_add_u32 v{v_tota}, {L_TOT}, v{v_tota}")
    a.e(f"v_bfe_u32 v{v_t0}, v0, 2, 2")
    a.e(f"v_lshlrev_b32 v{v_kr}, 11, v{v_t1}")
    a.e(f"v_lshl_add_u32 v{v_kr}, v{v_t0}, 8, v{v_kr}")
    a.e(f"v_lshl_add_u32 v{v_kr}, v{v_t0}, 6, v{v_kr}")
    a.e(f"v_and_b32 v{v_t0}, 3, v0")
    a.e(f"v_lshl_add_u32 v{v_kr}, v{v_t0}, 4, v{v_kr}")
    a.e(f"v_and_b32 v{v_t0}, 1, v{v_t1}")
    a.e(f"v_lshl_add_u32 v{v_kr}, v{v_t0}, 3, v{v_kr}")
    for j in range(1, 8):
        u, p = j >> 1, j & 1
        a.e(f"v_xor_b32 v{v_kr+j}, {64*u+8*p}, v{v_kr}")
    a.e(f"v_and_b32 v{v_t0}, 15, v0")
    a.e(f"v_lshlrev_b32 v{vT}, 2, v{v_t1}")
    for r in range(4):
        a.e(f"v_add_u32 v{vT+1}, {r}, v{vT}")
        a.e(f"v_cmp_lt_u32 s[{sM+2*r}:{sM+2*r+1}], v{vT+1}, v{v_t0}")
        a.e(f"v_cmp_le_u32 s[{sM+8+2*r}:{sM+8+2*r+1}], v{vT+1}, v{v_t0}")
    a.e(f"v_lshlrev_b32 v{vT}, 9, v{v_t0}")
    a.e(f"v_and_b32 v{vT+1}, 1, v{v_t0}")
    a.e(f"v_lshl_add_u32 v{vT}, v{vT+1}, 7, v{vT}")
    a.e(f"v_lshl_add_u32 v{vT}, v{v_t1}, 4, v{vT}")
    a.e(f"v_bfe_u32 v{vT+1}, v{v_t0}, 2, 1")
    a.e(f"v_lshl_add_u32 v{vT}, v{vT+1}, 3, v{vT}")
    a.e(f"s_lshl_b32 s{s_t+2}, s{s_w}, 13")
    a.e(f"v_add_u32 v{v_t0}, s{s_t+2}, v{vT}")
    a.e(f"v_mov_b32 v{v_max}, 1.0")

def unpack(dst, src):
    for j in range(4):
        a.e(f"v_lshlrev_b32 v{dst+2*j}, 16, v{src+j}")
        a.e(f"v_and_b32 v{dst+2*j+1}, 0xffff0000, v{src+j}")
def pk(op, dst, s0, s1, n=8, s1_sgpr=False):
    for j in range(0, n, 2):
        b = f"s[{s1}:{s1+1}]" if s1_sgpr else vr(s1+j, 2)
        a.e(f"v_pk_{op}_f32 {vr(dst+j,2)}, {vr(s0+j,2)}, {b}")
def cvt(dst, src, n=8):
    for j in range(0, n, 2):
        a.e(f"v_cvt_pk_bf16_f32 v{dst+j//2}, v{src+j}, v{src+j+1}")

def phaseA_elem():
    x0, x1, I, Tb, k0, k1 = vT, vT+8, vT+16, vT+24, vT+32, vT+40
    for u in range(4):
        unpack(x0, G(u, 0)); unpack(x1, G(u, 1))
        if u == 0:
            a.e(f"s_cmp_lg_u32 s{s_w}, 0")
            a.e("s_cbranch_scc1 L_noep")
            a.e(f"v_readfirstlane_b32 s{s_t+2}, v{vT+46}")
            a.e(f"s_cmp_eq_u32 s{s_t+2}, 0")
            a.e(f"s_cselect_b32 s{s_ep}, s{s_ep}, s{s_t+2}")
            a.e(f"v_mov_b32 v{vT+46}, s{s_ep}")
            a.e(f"v_mov_b32 v{vT+47}, {L_EP}")
            a.e(f"ds_write_b32 v{vT+47}, v{vT+46}", track=False)
            a.raw("    s_waitcnt lgkmcnt(0)")
            a.label("L_noep")
        pk("mul", x0, x0, s_nl2e, s1_sgpr=True); pk("mul", x1, x1, s_nl2e, s1_sgpr=True)
        for j in range(16): a.e(f"v_exp_f32 v{x0+j}, v{x0+j}")
        pk("add", x0, x0, s_one, s1_sgpr=True); pk("add", x1, x1, s_one, s1_sgpr=True)
        pk("mul", I, x0, x1)
        for sh in (1, 2, 4, 8):
            for j in range(8):
                a.e(f"v_mul_f32_dpp v{I+j}, v{I+j}, v{I+j} row_shr:{sh} row_mask:0xf bank_mask:0xf")
        for j in range(8):
            a.e(f"v_mul_f32_dpp v{x0+j}, v{I+j}, v{x0+j} row_shr:1 row_mask:0xf bank_mask:0xf")
        for j in range(8): a.e(f"v_rcp_f32 v{P(u,1)+j}, v{I+j}")
        for j in range(0, 8, 2): a.e(f"v_max3_f32 v{v_max}, v{v_max}, v{I+j}, v{I+j+1}")
        pk("mul", P(u, 0), P(u, 1), x1)
        for j in range(8):
            a.e(f"v_mov_b32_dpp v{Tb+j}, v{P(u,1)+j} row_newbcast:15 row_mask:0xf bank_mask:0xf")
        a.e(f"s_lshl_b32 s{s_t+2}, s{s_w}, 9")
        a.e(f"v_add_u32 v{v_t1}, s{s_t+2}, v{v_tota}")
        a.e(f"s_mov_b32 exec_lo, 0x80008000"); a.e(f"s_mov_b32 exec_hi, 0x80008000")
        a.e(f"ds_write_b128 v{v_t1}, {vr(P(u,1),4)} offset:{u*128}")
        a.e(f"ds_write_b128 v{v_t1}, {vr(P(u,1)+4,4)} offset:{u*128+16}")
        a.e("s_mov_b64 exec, -1")
        unpack(k0, K(u, 0)); unpack(k1, K(u, 1))
        pk("mul", k0, k0, x0); pk("mul", k1, k1, I)
        cvt(KW(u, 0), k0); cvt(KW(u, 1), k1)
        pk("mul", k0, k0, Tb); pk("mul", k1, k1, Tb)
        cvt(G(u, 0), k0); cvt(G(u, 1), k1)
        for t in range(2):
            a.e(f"v_xor_b32 v{x1}, {64*(u^t)}, v{v_t0}")
            a.e(f"v_xor_b32 v{x1+1}, {64*(u^t)+8}, v{v_t0}")
            a.e(f"ds_write_b64 v{x1}, {vr(G(u,t),2)} offset:{t*256}")
            a.e(f"ds_write_b64 v{x1+1}, {vr(G(u,t)+2,2)} offset:{t*256}")
            x1 += 2
        x1 = vT+8

def read_kT(dst, c, T):
    for hh in range(2):
        a.e(f"ds_read_b64_tr_b16 {vr(dst+2*hh,2)}, v{v_kr+T} offset:{c*8192+hh*1024}")
def read_tot(dst, c, u):
    a.e(f"ds_read_b128 {vr(dst,4)}, v{v_tota} offset:{c*512+u*128}")
    a.e(f"ds_read_b128 {vr(dst+4,4)}, v{v_tota} offset:{c*512+u*128+16}")

def chain_update(c, kT, tot, first, prefetch):
    for u in range(4):
        tg = tot + 8*(u & 1)
        if not first:
            pk("mul", vS+8*u, vS+8*u, tg)
            nu = u + 2
            if nu < 4: read_tot(tg, c, nu)
            elif prefetch: read_tot(tg, c+1, nu-4)
        for p in range(2):
            T = 2*u+p
            cc = "0" if first else vr(vS+4*T, 4)
            a.e(f"v_mfma_f32_16x16x32_bf16 {vr(vS+4*T,4)}, {vr(kT+4*T,4)}, {vr(vV+4*c,4)}, {cc}")
            if prefetch: read_kT(kT+4*T, c+1, T)

def main():
    prologue()
    stamp()
    phaseA_elem()
    a.e(f"v_mov_b32 v{vT}, 0x5f800000")
    a.e(f"v_cmp_nle_f32 s[{s_t+8}:{s_t+9}], v{v_max}, v{vT}")
    stamp()
    a.wait(vm=8, lgkm=0)
    a.e("s_barrier")
    stamp()
    a.e(f"v_lshrrev_b32 v{v_t1}, 4, v0")
    a.e(f"v_bfe_u32 v{vT}, v0, 2, 2")
    a.e(f"v_and_b32 v{vT+1}, 1, v{v_t1}")
    a.e(f"v_lshl_or_b32 v{vT+1}, v{vT+1}, 2, v{vT}")
    a.e(f"v_xor_b32 v{vT+1}, s{s_w}, v{vT+1}")
    a.e(f"v_lshlrev_b32 v{vT+1}, 5, v{vT+1}")
    a.e(f"v_lshl_add_u32 v{vT+1}, v{v_t1}, 11, v{vT+1}")
    a.e(f"v_lshl_add_u32 v{vT+1}, v{vT}, 8, v{vT+1}")
    a.e(f"v_and_b32 v{vT}, 3, v0")
    a.e(f"v_lshl_add_u32 v{vT+1}, v{vT}, 3, v{vT+1}")
    a.e(f"v_add_u32 v{v_t1}, {L_VQ}, v{vT+1}")
    a.e(f"v_mov_b32 v{vT}, {L_EP}")
    a.e(f"ds_read_b32 v{vT+1}, v{vT}")
    for c in range(8):
        for hh in range(2):
            a.e(f"ds_read_b64_tr_b16 {vr(vV+4*c+2*hh,2)}, v{v_t1} offset:{c*8192+hh*1024}")
    a.e(f"v_readfirstlane_b32 s{s_ep}, v{vT+1}")
    a.e(f"s_not_b32 s{s_nep}, s{s_ep}")
    a.wait(lgkm=0)
    a.e("s_barrier")
    a.e(f"s_cmp_eq_u32 s{s_seg}, 7")
    a.e("s_cbranch_scc1 L_skipA")
    kT, tot = vT, vT+32
    for T in range(8): read_kT(kT+4*T, 0, T)
    read_tot(tot, 1, 0); read_tot(tot+8, 1, 1)
    for c in range(8):
        chain_update(c, kT, tot, c == 0, c < 7)
    stamp()
    cvt(vT, vS, 32)
    a.e(f"v_lshlrev_b32 v{v_t1}, 4, v0")
    a.e(f"s_lshl_b32 s{s_t+2}, s{s_slot}, 12")
    for n in range(4):
        a.e(f"buffer_store_dwordx4 {vr(vT+4*n,4)}, v{v_t1}, {srd(sW)}, s{s_t+2} offen offset:{n*1024} sc1")
    a.e(f"v_lshlrev_b32 v{v_t1}, 3, v0")
    a.e(f"v_add_u32 v{vT+16}, {L_TOT}, v{v_t1}")
    for c in range(8): a.e(f"ds_read_b64 {vr(vT+18+2*c,2)}, v{vT+16} offset:{c*512}")
    for c in range(1, 8): a.e(f"v_pk_mul_f32 {vr(vT+18,2)}, {vr(vT+18,2)}, {vr(vT+18+2*c,2)}")
    a.e(f"s_lshl_b32 s{s_t+2}, s{s_slot}, 9")
    a.e(f"s_add_u32 s{s_t+2}, s{s_t+2}, {W_A}")
    a.e(f"buffer_store_dwordx2 {vr(vT+18,2)}, v{v_t1}, {srd(sW)}, s{s_t+2} offen sc1")
    a.e(f"v_mov_b32 v{vT+34}, s{s_ep}")
    a.e(f"v_mov_b32 v{vT+35}, s{s_nep}")
    a.e(f"v_mov_b32 v{vT+36}, 0")
    a.e(f"s_lshl_b32 s{s_t+2}, s{s_slot}, 6")
    a.e(f"s_add_u32 s{s_t+2}, s{s_t+2}, {W_F}")
    a.wait(vm=0)
    a.e("s_mov_b64 exec, 1")
    a.e(f"buffer_store_dwordx2 {vr(vT+34,2)}, v{vT+36}, {srd(sW)}, s{s_t+2} offen sc1")
    a.e("s_mov_b64 exec, -1")
    a.label("L_skipA")
    a.wait(vm=0, lgkm=0)
    stamp()
    x0, x1 = vT, vT+8
    acc = vT+16
    a.e(f"s_lshl_b32 s{s_t+2}, s{s_w}, 13")
    a.e(f"v_add_u32 v{v_t1}, s{s_t+2}, v{v_lin}")
    for u in range(4):
        unpack(x0, Q(u, 0)); unpack(x1, Q(u, 1))
        pk("mul", x0, x0, P(u, 0)); pk("mul", x1, x1, P(u, 1))
        cvt(Q(u, 0), x0); cvt(Q(u, 1), x1)
        for t in range(2):
            a.e(f"ds_write_b128 v{v_t1}, {vr(Q(u,t),4)} offset:{(t*4+u)*1024}")
        for tj in range(2):
            for ti in range(2):
                d = acc + (tj*2+ti)*4
                cc = "0" if u == 0 else vr(d, 4)
                a.e(f"v_mfma_f32_16x16x32_bf16 {vr(d,4)}, {vr(KW(u,tj),4)}, {vr(Q(u,ti),4)}, {cc}")
    for tj in range(2):
        for ti in range(2):
            d = acc + (tj*2+ti)*4
            for r in range(4):
                m = sM + 2*r + (0 if (tj == 1 and ti == 0) else 8)
                a.e(f"v_cndmask_b32 v{d+r}, 0, v{d+r}, s[{m}:{m+1}]")
    a.e(f"s_lshl_b32 s{s_t+2}, s{s_w}, 11")
    a.e(f"v_add_u32 v{v_t1}, s{s_t+2}, v{v_pta}")
    for ti in range(2):
        for r in range(4):
            a.e(f"v_cvt_pk_bf16_f32 v{x0+ti*4+r}, v{acc+ti*4+r}, v{acc+(2+ti)*4+r}")
        a.e(f"ds_write_b128 v{v_t1}, {vr(x0+ti*4,4)} offset:{ti*1024}")
    a.wait(lgkm=0)
    a.e("s_barrier")
    stamp()
    for j in range(32): a.e(f"v_mov_b32 v{vS+j}, 0")
    a.e(f"s_cmp_eq_u32 s{s_seg}, 0")
    a.e("s_cbranch_scc1 L_chainB")
    a.e(f"v_add_u32 v{v_t1}, 1, v0")
    a.e(f"v_lshlrev_b32 v{v_t1}, 9, v{v_t1}")
    a.e(f"s_lshl_b32 s{s_t+2}, s{s_slot}, 6")
    a.e(f"s_add_u32 s{s_t+2}, s{s_t+2}, {W_F}")
    a.e(f"v_sub_u32 v{v_t1}, s{s_t+2}, v{v_t1}")
    a.e(f"s_lshl_b32 s{s_t+2}, 1, s{s_seg}")
    a.e(f"s_sub_u32 s{s_t+2}, s{s_t+2}, 1")
    a.e(f"s_mov_b32 s{s_t+3}, 0")
    a.e(f"s_mov_b32 exec_lo, s{s_t+2}")
    a.e(f"s_mov_b32 exec_hi, 0")
    a.label("L_poll")
    a.e(f"buffer_load_dwordx2 {vr(vT,2)}, v{v_t1}, {srd(sW)}, 0 offen sc1")
    a.wait(vm=0)
    a.e(f"v_cmp_ne_u32 s[{s_t+4}:{s_t+5}], s{s_ep}, v{vT}")
    a.e(f"v_cmp_ne_u32 s[{s_t+6}:{s_t+7}], s{s_nep}, v{vT+1}")
    a.e(f"s_or_b64 s[{s_t+4}:{s_t+5}], s[{s_t+4}:{s_t+5}], s[{s_t+6}:{s_t+7}]")
    a.e(f"s_cmp_eq_u64 s[{s_t+4}:{s_t+5}], 0")
    a.e("s_cbranch_scc1 L_polldone")
    a.e("s_sleep 4")
    a.e(f"s_add_u32 s{s_t+3}, s{s_t+3}, 1")
    a.e(f"s_cmp_lt_u32 s{s_t+3}, 200000")
    a.e("s_cbranch_scc1 L_poll")
    a.label("L_polldone")
    a.e("s_mov_b64 exec, -1")
    stamp()
    LB = 16
    CA = 128
    a.e(f"v_lshlrev_b32 v{v_t1}, 4, v0")
    a.e(f"v_lshlrev_b32 v{v_t0}, 3, v0")
    for rho in range(6, 0, -1):
        a.e(f"s_sub_u32 s{s_t+2}, s{s_slot}, {8*rho}")
        a.e(f"s_lshl_b32 s{s_t+2}, s{s_t+2}, 9")
        a.e(f"s_add_u32 s{s_t+2}, s{s_t+2}, {W_A}")
        a.e(f"s_cmp_ge_u32 s{s_seg}, {rho}")
        a.e(f"s_cselect_b32 s{s_t+2}, s{s_t+2}, {OOB}")
        a.e(f"buffer_load_dwordx2 {vr(CA+2*(rho-1),2)}, v{v_t0}, {srd(sW)}, s{s_t+2} offen sc1")
    for rho in range(7, 0, -1):
        a.e(f"s_sub_u32 s{s_t+2}, s{s_slot}, {8*rho}")
        a.e(f"s_lshl_b32 s{s_t+2}, s{s_t+2}, 12")
        a.e(f"s_cmp_ge_u32 s{s_seg}, {rho}")
        a.e(f"s_cselect_b32 s{s_t+2}, s{s_t+2}, {OOB}")
        for n in range(4):
            a.e(f"buffer_load_dwordx4 {vr(LB+16*(7-rho)+4*n,4)}, v{v_t1}, {srd(sW)}, s{s_t+2} offen offset:{n*1024} sc1")
    a.e(f"v_add_u32 v{v_t0}, {L_AS}, v{v_t0}")
    for rho in range(6, 0, -1):
        a.e(f"ds_write_b64 v{v_t0}, {vr(CA+2*(rho-1),2)} offset:{(rho-1)*512}")
    a.e(f"v_add_u32 v{v_t0}, {L_AS-L_TOT}, v{v_tota}")
    a.wait(lgkm=0)
    AL = vT
    X = vT+32
    for rho in range(7, 0, -1):
        src = LB+16*(7-rho)
        if rho < 7:
            for u in range(4):
                a.e(f"ds_read_b128 {vr(AL+8*u,4)}, v{v_t0} offset:{(rho-1)*512+u*128}")
                a.e(f"ds_read_b128 {vr(AL+8*u+4,4)}, v{v_t0} offset:{(rho-1)*512+u*128+16}")
        for u in range(4):
            if rho == 7:
                unpack(vS+8*u, src+4*u)
            else:
                xx = X + 8*(u & 1)
                unpack(xx, src+4*u)
                for j in range(0, 8, 2):
                    a.e(f"v_pk_fma_f32 {vr(vS+8*u+j,2)}, {vr(vS+8*u+j,2)}, {vr(AL+8*u+j,2)}, {vr(xx+j,2)}")
    a.label("L_chainB")
    a.wait(vm=0, lgkm=0)
    stamp()
    kT, tot = 16, 48
    QS = 64
    PS = 96
    Sb = 104
    O = 120
    a.e(f"v_and_b32 v{v_t0}, 15, v0")
    a.e(f"v_lshlrev_b32 v{v_t0}, 9, v{v_t0}")
    a.e(f"v_bfe_u32 v{v_t1}, v0, 4, 1")
    a.e(f"v_lshl_add_u32 v{v_t0}, v{v_t1}, 8, v{v_t0}")
    a.e(f"v_lshrrev_b32 v{v_t1}, 5, v0")
    a.e(f"v_lshl_add_u32 v{v_t0}, v{v_t1}, 4, v{v_t0}")
    a.e(f"s_lshl_b32 s{s_t+2}, s{s_w}, 13")
    a.e(f"s_sub_u32 s{s_t+2}, s{s_off}, s{s_t+2}")
    a.e(f"s_lshl_b32 s{s_t+3}, s{s_w}, 5")
    a.e(f"s_add_u32 s{s_t+2}, s{s_t+2}, s{s_t+3}")
    def read_q(c):
        for t in range(2):
            a.e(f"ds_read_b128 {vr(PS+4*t,4)}, v{v_pta} offset:{c*2048+t*1024}")
        for u in range(4):
            for t in range(2):
                a.e(f"ds_read_b128 {vr(QS+(t*4+u)*4,4)}, v{v_lin} offset:{c*8192+(t*4+u)*1024}")
    read_q(0)
    read_tot(tot, 0, 0); read_tot(tot+8, 0, 1)
    for T in range(8): read_kT(kT+4*T, 0, T)
    for c in range(8):
        o = O + 8*(c & 1)
        cvt(Sb, vS, 32)
        for t in range(2):
            a.e(f"v_mfma_f32_16x16x32_bf16 {vr(o+4*t,4)}, {vr(vV+4*c,4)}, {vr(PS+4*t,4)}, 0")
        for u in range(4):
            for t in range(2):
                a.e(f"v_mfma_f32_16x16x32_bf16 {vr(o+4*t,4)}, {vr(Sb+4*u,4)}, {vr(QS+(t*4+u)*4,4)}, {vr(o+4*t,4)}")
        if c < 7:
            read_q(c+1)
            chain_update(c, kT, tot, False, c < 6)
        pk("mul", o, o, s_scale, s1_sgpr=True)
        ob = 136 + 4*(c & 1)
        cvt(ob, o)
        a.e(f"v_permlane16_swap_b32 v{ob}, v{ob+2}")
        a.e(f"v_permlane16_swap_b32 v{ob+1}, v{ob+3}")
        a.e(f"buffer_store_dwordx4 {vr(ob,4)}, v{v_t0}, {srd(sO)}, s{s_t+2} offen")
        a.e(f"s_add_u32 s{s_t+2}, s{s_t+2}, 8192")
    a.wait(vm=0)
    stamp()
    stamp_flush()
    a.label("L_end")
    a.e("s_endpgm")

main()
hdr = open("cdna_kernels/" + NAME + ".s.ref").read().split("; Override launch")[0]
out = hdr + f"""; Override launch geometry by editing the next line (default: block=256,
; grid=ceil(out_elems/256), lds=0). Harness parses it; keep it on one line.
; @launch grid=(256,1,1) block=(512,1,1) lds={LDS_BYTES}
.amdgcn_target "amdgcn-amd-amdhsa--gfx950"
.text
.globl {NAME}_kernel
.p2align 8
.type {NAME}_kernel,@function
{NAME}_kernel:
""" + a.text() + f""".section .rodata,"a"
.p2align 6
.amdhsa_kernel {NAME}_kernel
  .amdhsa_next_free_vgpr 256
  .amdhsa_next_free_sgpr 102
  .amdhsa_accum_offset 256
  .amdhsa_group_segment_fixed_size 0
  .amdhsa_kernarg_size 56
  .amdhsa_user_sgpr_count 2
  .amdhsa_user_sgpr_kernarg_segment_ptr 1
  .amdhsa_system_sgpr_workgroup_id_x 1
.end_amdhsa_kernel
"""
dst = [x for x in sys.argv[1:] if not x.startswith("--")]
open(dst[0] if dst else "cdna_kernels/" + NAME + ".s", "w").write(out)
print("lines", len(a.lines), "nops", a.nops)
```
